```python
import torch

def _softmax(x, axis=-1):
    return torch.softmax(x, dim=axis)
def _gelu(x):
    return torch.nn.functional.gelu(x, approximate="tanh")
def _silu(x):
    return torch.nn.functional.silu(x)
def _sigmoid(x):
    return torch.sigmoid(x)
def _layernorm(x, axis=-1, eps=1e-5):
    m = x.mean(dim=axis, keepdim=True)
    v = x.var(dim=axis, keepdim=True, unbiased=False)
    return (x - m) / torch.sqrt(v + eps)
def _scatter_add(tgt, idx, src, axis=0):
    return tgt.clone().index_add_(axis, idx, src)
def _segment_sum(src, seg, n):
    out = torch.zeros((n,) + src.shape[1:], dtype=src.dtype)
    return out.index_add_(0, seg, src)
def _pad(x, pw):
    flat = tuple(v for pair in reversed(pw) for v in pair)
    return torch.nn.functional.pad(x, flat)

kernel_name = 'concat_heads__sliding_block_cached__mha_block_cached__decode'

def setup_inputs():

    _w = (lambda a: (lambda t: t.to(torch.bfloat16) if t.is_floating_point() else t)(torch.as_tensor(a)))
    def _A_setup():
        B, Sq, D = 2, 1, 512
        Hq, Hkv, Sk, Dh = 32, 8, 16384, 128
        assert Hq % Hkv == 0, (Hq, Hkv)
        return {
            "x": _w((lambda *s: torch.randn(*s, dtype=torch.bfloat16) * 0.8)(B, Sq, D)),
            "k_cache": _w((lambda *s: torch.randn(*s, dtype=torch.bfloat16) * 1.6)(B, Hkv, Sk, Dh)),
            "v_cache": _w((lambda *s: torch.randn(*s, dtype=torch.bfloat16) * 0.2)(B, Hkv, Sk, Dh)),
            "wq": _w((lambda *s: torch.randn(*s, dtype=torch.bfloat16) * 1.6)(D, Hq * Dh) * (D ** -0.5)),
            "wo": _w((lambda *s: torch.randn(*s, dtype=torch.bfloat16) * 0.2)(Hq * Dh, D) * ((Hq * Dh) ** -0.5)),
        }
    _A_in = _A_setup()

    def _B_setup():
        B, Sq, D = 2, 1, 512
        H, Sk, Dh = 32, 16384, 128
        return {
            "x": _w((lambda *s: torch.randn(*s, dtype=torch.bfloat16) * 0.8)(B, Sq, D)),
            "k_cache": _w((lambda *s: torch.randn(*s, dtype=torch.bfloat16) * 1.6)(B, H, Sk, Dh)),
            "v_cache": _w((lambda *s: torch.randn(*s, dtype=torch.bfloat16) * 0.2)(B, H, Sk, Dh)),
            "wq": _w((lambda *s: torch.randn(*s, dtype=torch.bfloat16) * 1.6)(D, H * Dh) * (D ** -0.5)),
            "wo": _w((lambda *s: torch.randn(*s, dtype=torch.bfloat16) * 0.2)(H * Dh, D) * ((H * Dh) ** -0.5)),
        }
    _B_in = _B_setup()

    return {
        "A_x": _A_in["x"],
        "A_k_cache": _A_in["k_cache"],
        "A_v_cache": _A_in["v_cache"],
        "A_wq": _A_in["wq"],
        "A_wo": _A_in["wo"],
        "B_x": _B_in["x"],
        "B_k_cache": _B_in["k_cache"],
        "B_v_cache": _B_in["v_cache"],
        "B_wq": _B_in["wq"],
        "B_wo": _B_in["wo"],
    }

def reference(A_x, A_k_cache, A_v_cache, A_wq, A_wo, B_x, B_k_cache, B_v_cache, B_wq, B_wo):
    def _A_ref(x, k_cache, v_cache, wq, wo):
        B, Sq, D = x.shape
        Hq, Dh = 32, 128
        Hkv, Sk = k_cache.shape[1], k_cache.shape[2]
        W = min(4096, max(256, Sk // 4))
        rep = Hq // Hkv
        q = (lambda x, *d: x.permute(*d))((x @ wq).reshape(B, Sq, Hq, Dh), 0, 2, 1, 3)
        k = (lambda x, n, axis: torch.repeat_interleave(x, n, dim=axis))(k_cache[:, :, Sk - W:, :], rep, axis=1)
        v = (lambda x, n, axis: torch.repeat_interleave(x, n, dim=axis))(v_cache[:, :, Sk - W:, :], rep, axis=1)
        scores = torch.einsum("bhqd,bhkd->bhqk", q, k) * (Dh ** -0.5)
        p = _softmax(scores, axis=-1)
        o = torch.einsum("bhqk,bhkd->bhqd", p, v)
        return (lambda x, *d: x.permute(*d))(o, 0, 2, 1, 3).reshape(B, Sq, Hq * Dh) @ wo

    def _B_ref(x, k_cache, v_cache, wq, wo):
        B, Sq, D = x.shape
        H, Dh = 32, 128
        q = (lambda x, *d: x.permute(*d))((x @ wq).reshape(B, Sq, H, Dh), 0, 2, 1, 3)
        scores = torch.einsum("bhqd,bhkd->bhqk", q, k_cache) * (Dh ** -0.5)
        p = _softmax(scores, axis=-1)
        o = torch.einsum("bhqk,bhkd->bhqd", p, v_cache)
        return (lambda x, *d: x.permute(*d))(o, 0, 2, 1, 3).reshape(B, Sq, H * Dh) @ wo

    a = _A_ref(A_x, A_k_cache, A_v_cache, A_wq, A_wo)
    b = _B_ref(B_x, B_k_cache, B_v_cache, B_wq, B_wo)
    return torch.concatenate([a, b], axis=-1)
```

```python
import re
TRANS = ('v_exp_f32','v_log_f32','v_rcp_f32','v_rsq_f32','v_sqrt_f32','v_sin_f32','v_cos_f32')
def regs_of(tok):
    tok = tok.strip().lstrip('-')
    if tok.startswith('abs(') : tok = tok[4:-1]
    m = re.fullmatch(r'([vs])(\d+)', tok)
    if m: return [(m.group(1), int(m.group(2)))]
    m = re.fullmatch(r'([vs])\[(\d+):(\d+)\]', tok)
    if m: return [(m.group(1), i) for i in range(int(m.group(2)), int(m.group(3))+1)]
    if tok == 'vcc': return [('s', 106), ('s', 107)]
    if tok == 'exec': return [('s', 126), ('s', 127)]
    return []
def parse(line):
    s = line.split(';')[0].strip()
    if not s or s.endswith(':') or s.startswith('.'): return None
    parts = s.split(None, 1)
    mn = parts[0]
    ops = []
    if len(parts) > 1:
        depth = 0; cur = ''
        for ch in parts[1]:
            if ch == '[': depth += 1
            if ch == ']': depth -= 1
            if ch == ',' and depth == 0: ops.append(cur.strip()); cur = ''
            else: cur += ch
        ops.append(cur.strip())
    mods = ''
    if ops:
        lo = ops[-1].split(None, 1)
        ops[-1] = lo[0]
        if len(lo) > 1: mods = lo[1]
    return mn, ops, mods
def process(lines):
    out = []
    ws = 0
    vw = {}
    sw = {}
    stw = {}
    def need(n):
        nonlocal ws
        if n > 0:
            out.append(f"    s_nop {n-1}")
            ws += n
    for line in lines:
        p = parse(line)
        st = line.strip()
        if p is None:
            out.append(line)
            if st.endswith(':'):
                out.append("    s_nop 2"); ws += 3
            continue
        mn, ops, mods = p
        if mn == 's_nop':
            out.append(line); ws += int(ops[0], 0) + 1; continue
        isv = mn.startswith('v_')
        ismem = mn.startswith('buffer_') or mn.startswith('global_') or mn.startswith('ds_')
        req = 0
        def dist(w): return ws - w - 1
        if isv:
            base = mn.replace('_dpp','').replace('_e32','').replace('_e64','')
            dpp = mn.endswith('_dpp') or 'row_' in mods or 'quad_perm' in mods
            swap2 = base in ('v_swap_b32','v_permlane16_swap_b32','v_permlane32_swap_b32')
            if base.startswith('v_cmp'):
                dsts = regs_of(ops[0]); srcs = [r for o in ops[1:] for r in regs_of(o)]
            elif swap2:
                dsts = regs_of(ops[0]) + regs_of(ops[1]); srcs = list(dsts)
            else:
                dsts = regs_of(ops[0]); srcs = [r for o in ops[1:] for r in regs_of(o)]
                if base in ('v_fmac_f32','v_dot2c_f32_bf16'): srcs += dsts
                if base == 'v_cndmask_b32' and len(ops) == 3: srcs += [('s',106),('s',107)]
            isdot = base.startswith('v_dot')
            for i, r in enumerate(srcs):
                if r[0] == 'v' and r[1] in vw:
                    w, kind, pm = vw[r[1]]
                    d = dist(w)
                    if dpp and r in regs_of(ops[1]): req = max(req, 2 - d)
                    if base.startswith('v_permlane'): req = max(req, 2 - d)
                    if base in ('v_readfirstlane_b32','v_readlane_b32'): req = max(req, 1 - d)
                    if kind == 'trans' and base not in TRANS: req = max(req, 1 - d)
                    if kind == 'dot':
                        same = (pm == base)
                        isC = (base == 'v_dot2_f32_bf16' and len(ops) > 3 and r in regs_of(ops[3]) and r not in regs_of(ops[1]) + regs_of(ops[2])) or \
                              (base == 'v_dot2c_f32_bf16' and r in regs_of(ops[0]) and r not in regs_of(ops[1]) + regs_of(ops[2]))
                        if not (same and isC): req = max(req, 3 - d)
                if r[0] == 's' and r[1] in sw:
                    req = max(req, 2 - dist(sw[r[1]]))
            for r in dsts:
                if r[0] == 'v':
                    if r[1] in vw and vw[r[1]][1] == 'dot' and vw[r[1]][2] != base:
                        req = max(req, 3 - dist(vw[r[1]][0]))
                    if r[1] in stw: req = max(req, 2 - dist(stw[r[1]]))
            need(req)
            out.append(line)
            kind = 'dot' if isdot else ('trans' if base in TRANS else 'valu')
            for r in dsts:
                if r[0] == 'v': vw[r[1]] = (ws, kind, base)
                else: sw[r[1]] = ws
            ws += 1
            continue
        if ismem:
            allr = [r for o in ops for r in regs_of(o)]
            for r in allr:
                if r[0] == 's' and r[1] in sw: req = max(req, 5 - dist(sw[r[1]]))
                if r[0] == 'v' and r[1] in vw:
                    w, kind, pm = vw[r[1]]
                    if kind == 'dot': req = max(req, 3 - dist(w))
                    if kind == 'trans': req = max(req, 1 - dist(w))
            need(req)
            out.append(line)
            if ('store_dwordx4' in mn or 'store_dwordx3' in mn):
                for r in regs_of(ops[0]) if mn.startswith('buffer_') else regs_of(ops[1]):
                    stw[r[1]] = ws
            if 'load' in mn or mn.startswith('ds_read') or 'rtn' in mn:
                for r in regs_of(ops[0]):
                    if r[0] == 'v': vw.pop(r[1], None)
            ws += 1
            continue
        dsts = regs_of(ops[0]) if ops else []
        srcs = [r for o in ops for r in regs_of(o)]
        for r in srcs:
            if r[0] == 's' and r[1] in sw: req = max(req, 1 - dist(sw[r[1]]))
        need(req)
        out.append(line)
        for r in dsts:
            if r[0] == 's': sw.pop(r[1], None) if mn not in ('s_cmp_eq_u32','s_cmp_lg_u32','s_cmp_lt_u32','s_cmp_ge_u32','s_cmp_eq_u64') else None
        ws += 1
    return out
```

```python
import struct, sys, math

KNAME = "concat_heads__sliding_block_cached__mha_block_cached__decode_kernel"

def f32bits(x): return struct.unpack('<I', struct.pack('<f', x))[0]

CSCALE = (128 ** -0.5) * math.log2(math.e)
NEGBIG = -1.0e30
TAGK = 0x9E3779B1

WS_E      = 0x0
WS_CNT    = 0x1000
WS_Q      = 0x10000
WS_MLA    = 0x20000
WS_MLB    = 0x28000
WS_PARTA  = 0x100000
WS_PARTB  = 0x200000
WS_OUTA   = 0x300000
WS_OUTB   = 0x340000
WS_SIZE   = 0x400000

L_QP    = 0
L_SLOTA = 0
L_QA    = 16384
L_QB    = 17408
L_MISC  = 17920
L_TK    = L_MISC
L_CNTA  = L_MISC + 4
L_CNTB  = L_MISC + 8
L_CNTCA = L_MISC + 12
L_CNTCB = L_MISC + 16
L_MLA   = L_MISC + 64
L_MLB   = L_MLA + 256
L_OUTA  = L_MLB + 128
L_OUTB  = L_OUTA + 512
L_DESC  = L_OUTB + 512
L_SLOTB = L_DESC + 1280
L_TOTAL = L_SLOTB + 8192
L_TOTAL = (L_TOTAL + 255) // 256 * 256

class Gen:
    def __init__(self, NS=32, AHEAD=2, NA_ITER=6, ND_ITER=14, ldflags="nt", timeout=True, stamps=False):
        self.L = []
        self.NS = NS; self.AHEAD = AHEAD; self.NA_ITER = NA_ITER; self.ND_ITER = ND_ITER
        self.ld = ldflags
        self.uid = 0
        self.stamps = stamps
    def A(self, s): self.L.append("    " + s)
    def lab(self, s): self.L.append(s + ":")
    def newlab(self, p):
        self.uid += 1
        return f"L_{p}_{self.uid}"
    def C(self, s): self.L.append("    ; " + s)

S_WAVE=3
P_AX=16; P_AK=18; P_AV=20; P_AWQ=22; P_AWO=24; P_BX=26; P_BK=28; P_BV=30; P_BWQ=32; P_BWO=34; P_OUT=36; P_DBG=38; P_WS=40
S_TAG=42
S_C=43
R_AK=44; R_AV=48; R_BK=52; R_BV=56; R_WS=60; R_T0=64; R_T1=68
S_TEAM=72; S_MEM=73
S_T=[74,75,76,77,78,79,80,81]
S_KOFF=82
S_VOFF=[83,84]
S_PB=[85,86]
S_CUR=87
S_ITER=88
S_REQ=89
S_G=90
S_CNTA=92
S_EX=94
S_SPIN=96
S_SEL0=97; S_SEL1=98
S_STAMP=4
V_TID=0; V_LANE=1; V_L16=2
V_T=list(range(3,32))
QB=[32,36]; ACCB=[40,48]; MB=[56,58]; LB=[57,59]
QA=[60,64,68,72]; ACCA=[76,84,92,100]; MA=[108,109,110,111]; LA=[112,113,114,115]
V_X=list(range(116,128))
SLOT=[128,160,192,224]
def KR(s): return SLOT[s]
def VR(s): return SLOT[s]+16

def build(**kw):
    g = Gen(**kw)
    A, lab, C, newlab = g.A, g.lab, g.C, g.newlab
    NS, AHEAD = g.NS, g.AHEAD
    ld = g.ld
    COH = "sc0 sc1"

    def srd(r, p, size):
        A(f"s_mov_b32 s{r}, s{p}")
        A(f"s_and_b32 s{r+1}, s{p+1}, 0xffff")
        A(f"s_mov_b32 s{r+2}, {size:#x}")
        A(f"s_mov_b32 s{r+3}, 0x00020000")

    def stamp(idx):
        if not g.stamps: return
        A("s_memrealtime s[4:5]")
        A("s_waitcnt lgkmcnt(0)")
        A(f"s_lshl_b32 s6, s2, 3"); A(f"s_add_u32 s6, s6, s{S_WAVE}"); A("s_lshl_b32 s6, s6, 6")
        A(f"s_add_u32 s6, s6, {0x380000 + idx*4:#x}")
        A(f"v_mov_b32 v30, s6"); A("v_mov_b32 v31, s4")
        A(f"s_mov_b64 s[{S_EX}:{S_EX+1}], exec"); A("s_mov_b64 exec, 1")
        A(f"buffer_store_dword v31, v30, s[{R_WS}:{R_WS+3}], 0 offen")
        A(f"s_mov_b64 exec, s[{S_EX}:{S_EX+1}]")

    A("s_cmp_ge_u32 s2, 256")
    A("s_cbranch_scc1 L_end")
    A("s_load_dwordx16 s[16:31], s[0:1], 0")
    A("s_load_dwordx8 s[32:39], s[0:1], 64")
    A("s_load_dwordx2 s[40:41], s[0:1], 96")
    A(f"v_and_b32 v{V_LANE}, 63, v0")
    A(f"v_lshrrev_b32 v3, 6, v0")
    A(f"v_lshlrev_b32 v{V_L16}, 4, v{V_LANE}")
    A(f"v_readfirstlane_b32 s{S_WAVE}, v3")
    A(f"s_lshr_b32 s{S_TEAM}, s2, 3")
    A(f"s_and_b32 s{S_MEM}, s2, 7")
    A(f"s_mov_b32 s{S_C}, {f32bits(CSCALE):#x}")
    A(f"s_mov_b32 s{S_SEL0}, 0x05040100")
    A(f"s_mov_b32 s{S_SEL1}, 0x07060302")
    A("s_waitcnt lgkmcnt(0)")
    A(f"s_load_dword s{S_TAG}, s[{P_WS}:{P_WS+1}], {WS_E}")
    srd(R_AK, P_AK, 2*8*16384*128*2)
    srd(R_AV, P_AV, 2*8*16384*128*2)
    srd(R_BK, P_BK, 2*32*16384*128*2)
    srd(R_BV, P_BV, 2*32*16384*128*2)
    srd(R_WS, P_WS, WS_SIZE)
    t0,t1,t2,t3,t4,t5,t6,t7 = S_T

    L_noq = newlab("noq")
    A("s_and_b32 s4, s2, 8")
    A("s_cmp_lg_u32 s4, 0")
    A(f"s_cbranch_scc1 {L_noq}")
    A(f"s_lshr_b32 s4, s2, 4"); A("s_lshl_b32 s4, s4, 3"); A(f"s_add_u32 s4, s4, s{S_MEM}")
    A("s_and_b32 s5, s4, 63")
    A("s_lshr_b32 s6, s4, 6")
    A("s_cmp_eq_u32 s6, 0")
    A(f"s_cselect_b32 s8, s{P_AWQ}, s{P_BWQ}"); A(f"s_cselect_b32 s9, s{P_AWQ+1}, s{P_BWQ+1}")
    A(f"s_cselect_b32 s10, s{P_AX}, s{P_BX}"); A(f"s_cselect_b32 s11, s{P_AX+1}, s{P_BX+1}")
    srd(R_T0, 8, 512*4096*2)
    srd(R_T1, 10, 2*512*2)
    A(f"v_lshrrev_b32 v3, 3, v{V_LANE}")
    A(f"v_and_b32 v4, 7, v{V_LANE}")
    A("v_lshlrev_b32 v5, 16, v3")
    A("v_lshl_add_u32 v5, v4, 4, v5")
    A("v_lshlrev_b32 v6, 4, v3")
    A(f"s_lshl_b32 s7, s{S_WAVE}, 7")
    A("v_add_u32 v6, s7, v6")
    A(f"s_lshl_b32 s7, s{S_WAVE}, 19"); A("s_lshl_b32 s12, s5, 7"); A("s_add_u32 s7, s7, s12")
    WQ = 60
    XR = 92
    A(f"buffer_load_dwordx4 v[{XR}:{XR+3}], v6, s[{R_T1}:{R_T1+3}], 0 offen")
    A(f"buffer_load_dwordx4 v[{XR+4}:{XR+7}], v6, s[{R_T1}:{R_T1+3}], 0 offen offset:1024")
    for i in range(8):
        A(f"buffer_load_dwordx4 v[{WQ+4*i}:{WQ+4*i+3}], v5, s[{R_T0}:{R_T0+3}], s7 offen {ld}")
        if i < 7: A("s_add_u32 s7, s7, 8192")
    lab(L_noq)

    def issue_A():
        A(f"s_lshr_b32 s4, s2, 4"); A("s_lshl_b32 s4, s4, 22")
        A("s_and_b32 s5, s2, 15"); A("s_lshl_b32 s5, s5, 16")
        A("s_add_u32 s4, s4, s5"); A(f"s_add_u32 s4, s4, {3<<20:#x}")
        A(f"s_lshl_b32 s5, s{S_WAVE}, 12"); A("s_add_u32 s4, s4, s5")
        for i in range(2):
            s = 2+i
            for j in range(4):
                A(f"buffer_load_dwordx4 v[{KR(s)+4*j}:{KR(s)+4*j+3}], v{V_L16}, s[{R_AK}:{R_AK+3}], s4 offen offset:{1024*j} {ld}")
            for j in range(4):
                A(f"buffer_load_dwordx4 v[{VR(s)+4*j}:{VR(s)+4*j+3}], v{V_L16}, s[{R_AV}:{R_AV+3}], s4 offen offset:{1024*j} {ld}")
            if i == 0: A(f"s_add_u32 s4, s4, {8*4096}")
    def b_addr(sG, sO, dst, pb):
        A(f"s_and_b32 s4, {sG}, 7")
        A(f"s_lshr_b32 {pb}, s4, 2")
        A(f"s_lshl_b32 s5, {pb}, 5"); A(f"s_add_u32 s5, s5, s{S_TEAM}"); A("s_lshl_b32 s5, s5, 22")
        A("s_and_b32 s4, s4, 3"); A("s_lshl_b32 s4, s4, 20"); A("s_add_u32 s5, s5, s4")
        A(f"s_lshr_b32 s4, {sG}, 3"); A("s_lshl_b32 s4, s4, 15"); A("s_add_u32 s5, s5, s4")
        A(f"s_lshl_b32 s4, {sO}, 12"); A(f"s_add_u32 {dst}, s5, s4")
    def loadK(s, soff):
        for j in range(4):
            A(f"buffer_load_dwordx4 v[{KR(s)+4*j}:{KR(s)+4*j+3}], v{V_L16}, s[{R_BK}:{R_BK+3}], {soff} offen offset:{1024*j} {ld}")
    def loadV(s, soff):
        for j in range(4):
            A(f"buffer_load_dwordx4 v[{VR(s)+4*j}:{VR(s)+4*j+3}], v{V_L16}, s[{R_BV}:{R_BV+3}], {soff} offen offset:{1024*j} {ld}")
    def issue_B0():
        for f in range(2):
            A(f"s_add_u32 s{t0}, s{S_MEM}, {8*f}")
            b_addr(f"s{t0}", f"s{S_WAVE}", f"s{S_KOFF}", f"s{S_PB[f]}")
            loadK(f, f"s{S_KOFF}")
            loadV(f, f"s{S_KOFF}")

    L_w7skip = newlab("w7skip")
    A(f"s_cmp_eq_u32 s{S_WAVE}, 7")
    A(f"s_cbranch_scc1 {L_w7skip}")
    issue_A()
    issue_B0()
    lab(L_w7skip)

    L_noinit = newlab("noinit")
    A(f"s_cmp_lg_u32 s{S_WAVE}, 0")
    A(f"s_cbranch_scc1 {L_noinit}")
    A(f"v_lshlrev_b32 v3, 2, v{V_LANE}")
    A("v_mov_b32 v4, 0"); A("v_mov_b32 v7, -1")
    for k in range(4):
        A(f"ds_write_b32 v3, v4 offset:{L_OUTA + 256*k}")
    for k in range(5):
        A(f"ds_write_b32 v3, v7 offset:{L_DESC + 256*k}")
    A(f"v_cmp_eq_u32 vcc, 0, v{V_LANE}")
    A("v_mov_b32 v8, 16")
    A("s_nop 0")
    A("v_cndmask_b32 v8, 0, v8, vcc")
    A(f"v_cmp_gt_u32 vcc, 8, v{V_LANE}")
    A(f"s_and_saveexec_b64 s[{S_EX}:{S_EX+1}], vcc")
    A(f"ds_write_b32 v3, v8 offset:{L_MISC}")
    A(f"s_mov_b64 exec, s[{S_EX}:{S_EX+1}]")
    lab(L_noinit)

    L_noq2 = newlab("noq2")
    A("s_and_b32 s4, s2, 8")
    A("s_cmp_lg_u32 s4, 0")
    A(f"s_cbranch_scc1 {L_noq2}")
    L_w7w = newlab("w7w"); L_wdone = newlab("wdone")
    A(f"s_cmp_eq_u32 s{S_WAVE}, 7")
    A(f"s_cbranch_scc1 {L_w7w}")
    A("s_waitcnt vmcnt(32)")
    A(f"s_branch {L_wdone}")
    lab(L_w7w)
    A("s_waitcnt vmcnt(0)")
    lab(L_wdone)
    QACC = 100
    PT = 116
    for ip in range(4):
        W0 = WQ + 8*ip; W1 = W0 + 4
        for k in range(4):
            A(f"v_perm_b32 v{PT+2*k}, v{W1+k}, v{W0+k}, s{S_SEL0}")
            A(f"v_perm_b32 v{PT+2*k+1}, v{W1+k}, v{W0+k}, s{S_SEL1}")
        for b in range(2):
            for cidx in range(8):
                src2 = "0" if ip == 0 else f"v{QACC+8*b+cidx}"
                A(f"v_dot2_f32_bf16 v{QACC+8*b+cidx}, v{PT+cidx}, v{XR+4*b+ip}, {src2}")
    A("s_nop 2")
    for i in range(16):
        A(f"v_add_f32_dpp v{QACC+i}, v{QACC+i}, v{QACC+i} row_ror:8 row_mask:0xf bank_mask:0xf")
    A(f"v_lshrrev_b32 v3, 4, v{V_LANE}")
    A(f"s_lshl_b32 s4, s{S_WAVE}, 2")
    A("v_add_u32 v3, s4, v3")
    A("v_lshlrev_b32 v3, 9, v3")
    A(f"v_and_b32 v4, 7, v{V_LANE}")
    A("v_lshl_add_u32 v3, v4, 5, v3")
    A(f"v_and_b32 v4, 8, v{V_LANE}")
    A("v_cmp_eq_u32 vcc, 0, v4")
    A(f"s_and_saveexec_b64 s[{S_EX}:{S_EX+1}], vcc")
    for b in range(2):
        A(f"ds_write_b128 v3, v[{QACC+8*b}:{QACC+8*b+3}] offset:{L_QP + 256*b}")
        A(f"ds_write_b128 v3, v[{QACC+8*b+4}:{QACC+8*b+7}] offset:{L_QP + 256*b + 16}")
    A(f"s_mov_b64 exec, s[{S_EX}:{S_EX+1}]")
    lab(L_noq2)
    A("s_waitcnt lgkmcnt(0)")
    A(f"s_add_u32 s{S_TAG}, s{S_TAG}, {TAGK:#x}")
    A("s_barrier")

    L_notw7 = newlab("notw7")
    A(f"s_cmp_lg_u32 s{S_WAVE}, 7")
    A(f"s_cbranch_scc1 {L_notw7}")
    L_nopub = newlab("nopub")
    A("s_and_b32 s4, s2, 8")
    A("s_cmp_lg_u32 s4, 0")
    A(f"s_cbranch_scc1 {L_nopub}")
    A(f"v_lshlrev_b32 v3, 3, v{V_LANE}")
    for half in range(2):
        for p in range(16):
            pp = half*16+p
            A(f"ds_read_b64 v[{60+2*p}:{61+2*p}], v3 offset:{L_QP + pp*512}")
        A("s_waitcnt lgkmcnt(0)")
        if half == 0:
            A("v_add_f32 v4, v60, v62"); A("v_add_f32 v5, v61, v63")
            st = 2
        else:
            st = 0
        for p in range(st, 16):
            A(f"v_add_f32 v4, v4, v{60+2*p}"); A(f"v_add_f32 v5, v5, v{61+2*p}")
    A("v_cvt_pk_bf16_f32 v6, v4, v5")
    A(f"v_mov_b32 v7, s{S_TAG}")
    A(f"s_lshr_b32 s4, s2, 4"); A("s_lshl_b32 s4, s4, 3"); A(f"s_add_u32 s4, s4, s{S_MEM}")
    A("s_and_b32 s5, s4, 63"); A("s_lshr_b32 s6, s4, 6")
    A("s_lshl_b32 s6, s6, 15")
    A("s_lshl_b32 s5, s5, 8")
    A("s_add_u32 s6, s6, s5"); A(f"s_add_u32 s6, s6, {WS_Q:#x}")
    A(f"v_lshrrev_b32 v8, 5, v{V_LANE}"); A("v_lshlrev_b32 v8, 14, v8")
    A(f"v_and_b32 v9, 31, v{V_LANE}"); A("v_lshl_add_u32 v8, v9, 3, v8")
    A(f"buffer_store_dwordx2 v[6:7], v8, s[{R_WS}:{R_WS+3}], s6 offen {COH}")
    lab(L_nopub)
    A(f"v_lshrrev_b32 v8, 5, v{V_LANE}"); A("v_lshlrev_b32 v8, 14, v8")
    A(f"v_and_b32 v9, 31, v{V_LANE}"); A("v_lshl_add_u32 v8, v9, 4, v8")
    A(f"s_lshl_b32 s4, s{S_TEAM}, 9"); A(f"s_add_u32 s4, s4, {WS_Q + 2*2048*8:#x}")
    A(f"s_lshr_b32 s5, s2, 7"); A("s_lshl_b32 s5, s5, 14")
    A(f"s_lshr_b32 s6, s2, 4"); A("s_and_b32 s6, s6, 7"); A("s_lshl_b32 s6, s6, 11")
    A("s_add_u32 s5, s5, s6"); A(f"s_add_u32 s5, s5, {WS_Q:#x}")
    A(f"s_mov_b32 s{S_SPIN}, 0")
    L_poll = newlab("pollq"); L_pok = newlab("pollq_ok")
    lab(L_poll)
    A(f"buffer_load_dwordx4 v[12:15], v8, s[{R_WS}:{R_WS+3}], s4 offen {COH}")
    A(f"buffer_load_dwordx4 v[16:19], v{V_L16}, s[{R_WS}:{R_WS+3}], s5 offen {COH}")
    A(f"buffer_load_dwordx4 v[20:23], v{V_L16}, s[{R_WS}:{R_WS+3}], s5 offen offset:1024 {COH}")
    A("s_waitcnt vmcnt(0)")
    def tagcheck(regs):
        A(f"v_xor_b32 v24, s{S_TAG}, v{regs[0]}")
        for r in regs[1:]:
            A(f"v_xor_b32 v25, s{S_TAG}, v{r}")
            A(f"v_or_b32 v24, v24, v25")
        A("v_cmp_ne_u32 vcc, 0, v24")
        A("s_nop 0")
        A("s_cmp_eq_u64 vcc, 0")
    tagcheck([13,15,17,19,21,23])
    A(f"s_cbranch_scc1 {L_pok}")
    A("s_sleep 1")
    A(f"s_add_u32 s{S_SPIN}, s{S_SPIN}, 1")
    A(f"s_cmp_lt_u32 s{S_SPIN}, 0x20000")
    A(f"s_cbranch_scc1 {L_poll}")
    lab(L_pok)
    A(f"v_lshlrev_b32 v3, 3, v{V_LANE}")
    A("v_mov_b32 v13, v14"); A("v_mov_b32 v17, v18"); A("v_mov_b32 v21, v22")
    A(f"ds_write_b64 v3, v[12:13] offset:{L_QB}")
    A(f"ds_write_b64 v3, v[16:17] offset:{L_QA}")
    A(f"ds_write_b64 v3, v[20:21] offset:{L_QA+512}")
    A("s_waitcnt lgkmcnt(0)")
    lab(L_notw7)
    A("s_barrier")
    stamp(0)
    L_w7done = newlab("w7done")
    A(f"s_cmp_lg_u32 s{S_WAVE}, 7")
    A(f"s_cbranch_scc1 {L_w7done}")
    issue_A()
    issue_B0()
    lab(L_w7done)
    A(f"v_and_b32 v3, 15, v{V_LANE}"); A("v_lshlrev_b32 v3, 4, v3")
    for gq in range(4):
        A(f"ds_read_b128 v[{QA[gq]}:{QA[gq]+3}], v3 offset:{L_QA + 256*gq}")
    A(f"s_lshr_b32 s{S_CUR}, s{S_MEM}, 2")
    A(f"s_lshl_b32 s4, s{S_CUR}, 8")
    A("v_add_u32 v4, s4, v3")
    A("s_xor_b32 s4, s4, 256")
    A("v_add_u32 v5, s4, v3")
    A(f"ds_read_b128 v[{QB[0]}:{QB[0]+3}], v4 offset:{L_QB}")
    A(f"ds_read_b128 v[{QB[1]}:{QB[1]+3}], v5 offset:{L_QB}")
    for gq in range(4):
        for i in range(8): A(f"v_mov_b32 v{ACCA[gq]+i}, 0")
        A(f"v_mov_b32 v{MA[gq]}, {f32bits(NEGBIG):#x}"); A(f"v_mov_b32 v{LA[gq]}, 0")
    for sg in range(2):
        for i in range(8): A(f"v_mov_b32 v{ACCB[sg]+i}, 0")
        A(f"v_mov_b32 v{MB[sg]}, {f32bits(NEGBIG):#x}"); A(f"v_mov_b32 v{LB[sg]}, 0")
    A("s_waitcnt lgkmcnt(0)")

    S0,S1,S2,S3,UA,UB,RR,MX,AL,T0,T1,PLO,PHI = 3,4,5,6,7,8,9,10,11,12,13,14,15
    SIG = [0,2,1,3]
    def qk(K, q):
        for k in range(4):
            for j in range(4):
                src2 = "0" if k == 0 else f"v{S0+j}"
                A(f"v_dot2_f32_bf16 v{S0+j}, v{K+4*j+k}, v{q+k}, {src2}")
    def reduce_softmax(acc, m, l, plo=PLO, phi=PHI):
        A(f"v_add_f32_dpp v{UA}, v{S0}, v{S0} row_ror:8 row_mask:0xf bank_mask:0x3")
        A(f"v_add_f32_dpp v{UA}, v{S1}, v{S1} row_ror:8 row_mask:0xf bank_mask:0xc")
        A(f"v_add_f32_dpp v{UB}, v{S2}, v{S2} row_ror:8 row_mask:0xf bank_mask:0x3")
        A(f"v_add_f32_dpp v{UB}, v{S3}, v{S3} row_ror:8 row_mask:0xf bank_mask:0xc")
        A(f"v_add_f32_dpp v{RR}, v{UA}, v{UA} row_half_mirror row_mask:0xf bank_mask:0x5")
        A("s_nop 0")
        A(f"v_add_f32_dpp v{RR}, v{UB}, v{UB} row_half_mirror row_mask:0xf bank_mask:0xa")
        A("s_nop 1")
        A(f"v_add_f32_dpp v{RR}, v{RR}, v{RR} quad_perm:[1,0,3,2] row_mask:0xf bank_mask:0xf")
        A("s_nop 1")
        A(f"v_add_f32_dpp v{RR}, v{RR}, v{RR} quad_perm:[2,3,0,1] row_mask:0xf bank_mask:0xf")
        A("s_nop 1")
        A(f"v_max_f32_dpp v{MX}, v{RR}, v{RR} row_half_mirror row_mask:0xf bank_mask:0xf")
        A("s_nop 1")
        A(f"v_max_f32_dpp v{MX}, v{MX}, v{MX} row_ror:8 row_mask:0xf bank_mask:0xf")
        A(f"v_max_f32 v{MX}, v{MX}, v{m}")
        A(f"v_sub_f32 v{T0}, v{m}, v{MX}")
        A(f"v_mul_f32 v{T1}, s{S_C}, v{MX}")
        A(f"v_mul_f32 v{T0}, s{S_C}, v{T0}")
        A(f"v_fma_f32 v{T1}, v{RR}, s{S_C}, -v{T1}")
        A(f"v_exp_f32 v{AL}, v{T0}")
        A(f"v_exp_f32 v{T1}, v{T1}")
        A(f"v_mov_b32 v{m}, v{MX}")
        A(f"v_cvt_pk_bf16_f32 v{plo}, v{T1}, 0")
        A(f"v_lshlrev_b32 v{phi}, 16, v{plo}")
        for i in range(8):
            A(f"v_mul_f32 v{acc+i}, v{AL}, v{acc+i}")
        A(f"v_fma_f32 v{l}, v{l}, v{AL}, v{phi}")
    def pv(V, acc, plo=PLO, phi=PHI):
        for j in range(4):
            for k in range(4):
                A(f"v_dot2c_f32_bf16_dpp v{acc+2*k}, v{plo}, v{V+4*j+k} row_newbcast:{4*SIG[j]} row_mask:0xf bank_mask:0xf")
                A(f"v_dot2c_f32_bf16_dpp v{acc+2*k+1}, v{phi}, v{V+4*j+k} row_newbcast:{4*SIG[j]} row_mask:0xf bank_mask:0xf")

    def wred(acc, m, l, slot_imm, ml_imm, vslot, vml):
        A("s_nop 2")
        A(f"v_add_f32_dpp v{l}, v{l}, v{l} row_half_mirror row_mask:0xf bank_mask:0xf")
        A(f"v_mov_b32 v{T0}, v{m}"); A(f"v_mov_b32 v{T1}, v{m}")
        A(f"v_add_f32_dpp v{l}, v{l}, v{l} row_ror:8 row_mask:0xf bank_mask:0xf")
        A(f"v_permlane16_swap_b32 v{T0}, v{T1}")
        A("s_nop 0")
        A(f"v_max_f32 v{T0}, v{T0}, v{T1}")
        A(f"v_mov_b32 v{T1}, v{T0}")
        A("s_nop 1")
        A(f"v_permlane32_swap_b32 v{T0}, v{T1}")
        A("s_nop 0")
        A(f"v_max_f32 v{MX}, v{T0}, v{T1}")
        A(f"v_sub_f32 v{T0}, v{m}, v{MX}")
        A(f"v_mul_f32 v{T0}, s{S_C}, v{T0}")
        A(f"v_exp_f32 v{AL}, v{T0}")
        A("s_nop 0")
        for i in range(8): A(f"v_mul_f32 v{acc+i}, v{AL}, v{acc+i}")
        A(f"v_mul_f32 v{l}, v{AL}, v{l}")
        A(f"v_mov_b32 v{T1}, v{l}")
        for i in range(0,8,2):
            A(f"v_permlane16_swap_b32 v{acc+i}, v{acc+i+1}")
        A(f"v_permlane16_swap_b32 v{l}, v{T1}")
        A("s_nop 0")
        for i in range(0,8,2):
            A(f"v_add_f32 v{acc+i}, v{acc+i}, v{acc+i+1}")
        A(f"v_add_f32 v{l}, v{l}, v{T1}")
        A(f"v_mov_b32 v{T1}, v{l}")
        A("s_nop 0")
        A(f"v_permlane32_swap_b32 v{acc}, v{acc+2}")
        A(f"v_permlane32_swap_b32 v{acc+4}, v{acc+6}")
        A(f"v_permlane32_swap_b32 v{l}, v{T1}")
        A("s_nop 0")
        A(f"v_add_f32 v{acc}, v{acc}, v{acc+2}")
        A(f"v_add_f32 v{acc+4}, v{acc+4}, v{acc+6}")
        A(f"v_add_f32 v{l+0}, v{l}, v{T1}")
        A(f"ds_write_b32 v{vslot}, v{acc} offset:{slot_imm}")
        A(f"ds_write_b32 v{vslot}, v{acc+4} offset:{slot_imm+16}")
        A(f"v_mov_b32 v{T0}, v{MX}"); A(f"v_mov_b32 v{T1}, v{l}")
        A(f"s_mov_b64 s[{S_EX}:{S_EX+1}], exec"); A("s_mov_b64 exec, 1")
        A(f"ds_write_b64 v{vml}, v[{T0}:{T0+1}] offset:{ml_imm}")
        A(f"s_mov_b64 exec, s[{S_EX}:{S_EX+1}]")

    def arrive(cnt_addr, lastval, L_skip):
        A("s_waitcnt lgkmcnt(0)")
        A(f"v_mov_b32 v{T0}, {cnt_addr}"); A(f"v_mov_b32 v{T1}, 1")
        A(f"s_mov_b64 s[{S_EX}:{S_EX+1}], exec"); A("s_mov_b64 exec, 1")
        A(f"ds_add_rtn_u32 v{T0}, v{T0}, v{T1}")
        A(f"s_mov_b64 exec, s[{S_EX}:{S_EX+1}]")
        A("s_waitcnt lgkmcnt(0)")
        A(f"v_readfirstlane_b32 s4, v{T0}")
        A("s_nop 3")
        A(f"s_cmp_lg_u32 s4, {lastval}")
        A(f"s_cbranch_scc1 {L_skip}")

    def merge_publish(slot_base, wstride, ml_base, s_part, s_ml):
        A(f"v_lshlrev_b32 v3, 3, v{V_LANE}")
        A("v_mov_b32 v4, 0")
        for w in range(8):
            A(f"ds_read_b64 v[{16+2*w}:{17+2*w}], v3 offset:{slot_base + w*wstride}")
        for k in range(4):
            A(f"ds_read_b128 v[{116+0}:{116+3}], v4 offset:{ml_base + 16*k}") if False else None
        MLR = g.mlr
        for k in range(4):
            A(f"ds_read_b128 v[{MLR+4*k}:{MLR+4*k+3}], v4 offset:{ml_base + 16*k}")
        A("s_waitcnt lgkmcnt(0)")
        A(f"v_max3_f32 v5, v{MLR}, v{MLR+2}, v{MLR+4}")
        A(f"v_max3_f32 v5, v5, v{MLR+6}, v{MLR+8}")
        A(f"v_max3_f32 v5, v5, v{MLR+10}, v{MLR+12}")
        A(f"v_max_f32 v5, v5, v{MLR+14}")
        for w in range(8):
            A(f"v_sub_f32 v{MLR+2*w}, v{MLR+2*w}, v5")
            A(f"v_mul_f32 v{MLR+2*w}, s{S_C}, v{MLR+2*w}")
            A(f"v_exp_f32 v{MLR+2*w}, v{MLR+2*w}")
        A("s_nop 0")
        A(f"v_mul_f32 v6, v{MLR}, v16"); A(f"v_mul_f32 v8, v{MLR}, v17"); A(f"v_mul_f32 v12, v{MLR}, v{MLR+1}")
        for w in range(1,8):
            A(f"v_fmac_f32 v6, v{MLR+2*w}, v{16+2*w}")
            A(f"v_fmac_f32 v8, v{MLR+2*w}, v{17+2*w}")
            A(f"v_fmac_f32 v12, v{MLR+2*w}, v{MLR+2*w+1}")
        A(f"v_mov_b32 v7, s{S_TAG}"); A(f"v_mov_b32 v9, s{S_TAG}")
        A(f"buffer_store_dwordx4 v[6:9], v{V_L16}, s[{R_WS}:{R_WS+3}], {s_part} offen {COH}")
        A(f"v_mov_b32 v10, v5"); A(f"v_mov_b32 v11, s{S_TAG}"); A(f"v_mov_b32 v13, s{S_TAG}")
        A("v_mov_b32 v4, 0")
        A(f"s_mov_b64 s[{S_EX}:{S_EX+1}], exec"); A("s_mov_b64 exec, 1")
        A(f"buffer_store_dwordx4 v[10:13], v4, s[{R_WS}:{R_WS+3}], {s_ml} offen {COH}")
        A(f"s_mov_b64 exec, s[{S_EX}:{S_EX+1}]")
        A("s_nop 1")

    stamp(1)
    for i in range(2):
        s = 2+i
        A(f"s_waitcnt vmcnt({28-8*i})")
        for gq in range(4):
            qk(KR(s), QA[gq])
            reduce_softmax(ACCA[gq], MA[gq], LA[gq], plo=16+2*gq, phi=17+2*gq)
        A(f"s_waitcnt vmcnt({24-8*i})")
        for gq in range(4):
            pv(VR(s), ACCA[gq], plo=16+2*gq, phi=17+2*gq)
    VS, VML = 28, 29
    A(f"v_and_b32 v{VS}, 15, v{V_LANE}"); A(f"v_lshlrev_b32 v{VS}, 5, v{VS}")
    A(f"v_lshrrev_b32 v{VML}, 4, v{V_LANE}"); A(f"v_lshl_add_u32 v{VS}, v{VML}, 2, v{VS}")
    A(f"v_mov_b32 v27, v{VS}")
    A(f"s_lshl_b32 s4, s{S_WAVE}, 11"); A(f"v_add_u32 v{VS}, s4, v{VS}")
    A(f"s_lshl_b32 s4, s{S_WAVE}, 3"); A(f"v_mov_b32 v{VML}, s4")
    for gq in range(4):
        wred(ACCA[gq], MA[gq], LA[gq], L_SLOTA + 512*gq, L_MLA + 64*gq, VS, VML)
    L_amerged = newlab("amerged")
    arrive(L_CNTA, 7, L_amerged)
    g.mlr = KR(2)
    A(f"s_lshr_b32 s{t0}, s2, 7"); A(f"s_lshl_b32 s{t0}, s{t0}, 5")
    A(f"s_lshr_b32 s{t1}, s2, 4"); A(f"s_and_b32 s{t1}, s{t1}, 7"); A(f"s_lshl_b32 s{t1}, s{t1}, 2")
    A(f"s_add_u32 s{t0}, s{t0}, s{t1}")
    A(f"s_lshl_b32 s{t0}, s{t0}, 4"); A(f"s_and_b32 s{t1}, s2, 15"); A(f"s_add_u32 s{t0}, s{t0}, s{t1}")
    A(f"s_lshl_b32 s{t1}, s{t0}, 4"); A(f"s_add_u32 s{t1}, s{t1}, {WS_MLA:#x}")
    A(f"s_lshl_b32 s{t0}, s{t0}, 10"); A(f"s_add_u32 s{t0}, s{t0}, {WS_PARTA:#x}")
    for gq in range(4):
        merge_publish(L_SLOTA + 512*gq, 2048, L_MLA + 64*gq, f"s{t0}", f"s{t1}")
        if gq < 3:
            A(f"s_add_u32 s{t0}, s{t0}, {16*1024}"); A(f"s_add_u32 s{t1}, s{t1}, {16*16}")
    lab(L_amerged)
    stamp(2)

    WOA = SLOT[2]
    WOB = SLOT[2] + 16
    PCR = SLOT[3]
    def wo_load(dst, pbase):
        srd(R_T0, pbase, 4096*512*2)
        A(f"v_and_b32 v3, 3, v{V_LANE}"); A("v_lshlrev_b32 v3, 12, v3")
        A(f"v_lshrrev_b32 v4, 2, v{V_LANE}"); A("v_and_b32 v4, 7, v4"); A("v_lshl_add_u32 v3, v4, 4, v3")
        A(f"s_lshl_b32 s4, s{S_TEAM}, 17"); A(f"s_lshl_b32 s5, s{S_WAVE}, 14"); A("s_add_u32 s4, s4, s5")
        A(f"s_lshl_b32 s5, s{S_MEM}, 7"); A("s_add_u32 s4, s4, s5")
        for i4 in range(4):
            A(f"buffer_load_dwordx4 v[{dst+4*i4}:{dst+4*i4+3}], v3, s[{R_T0}:{R_T0+3}], s4 offen offset:{1024*i4} {ld}")
    def phaseC(isA, wo, outacc, cntaddr, ws_out):
        nr = 2 if isA else 1
        A(f"v_lshrrev_b32 v3, 5, v{V_LANE}")
        A(f"v_lshrrev_b32 v4, 2, v{V_LANE}"); A("v_and_b32 v4, 7, v4")
        if isA:
            A("v_lshlrev_b32 v3, 9, v3")
            A("v_add_u32 v3, v3, v4")
            A(f"s_lshl_b32 s{t0}, s{S_TEAM}, 4")
        else:
            A("v_lshlrev_b32 v3, 3, v3")
            A("v_add_u32 v3, v3, v4")
            A(f"s_lshl_b32 s{t0}, s{S_TEAM}, 4")
        A(f"v_add_u32 v3, s{t0}, v3")
        A("v_lshlrev_b32 v5, 4, v3")
        A("v_lshlrev_b32 v6, 10, v3")
        A(f"v_and_b32 v4, 3, v{V_LANE}"); A("v_lshl_add_u32 v6, v4, 5, v6")
        A(f"s_lshl_b32 s{t0}, s{S_WAVE}, 7"); A(f"s_add_u32 s{t0}, s{t0}, {(WS_PARTA if isA else WS_PARTB):#x}")
        A(f"s_mov_b32 s{t1}, {(WS_MLA if isA else WS_MLB):#x}")
        A(f"s_add_u32 s{t2}, s{t0}, 8192"); A(f"s_add_u32 s{t3}, s{t1}, 128")
        A(f"s_mov_b32 s{S_SPIN}, 0")
        Lp = newlab("pc_poll"); Lok = newlab("pc_ok")
        lab(Lp)
        for r in range(nr):
            P = PCR + 12*r
            so = f"s{t0}" if r == 0 else f"s{t2}"
            sm = f"s{t1}" if r == 0 else f"s{t3}"
            A(f"buffer_load_dwordx4 v[{P}:{P+3}], v6, s[{R_WS}:{R_WS+3}], {so} offen {COH}")
            A(f"buffer_load_dwordx4 v[{P+4}:{P+7}], v6, s[{R_WS}:{R_WS+3}], {so} offen offset:16 {COH}")
            A(f"buffer_load_dwordx4 v[{P+8}:{P+11}], v5, s[{R_WS}:{R_WS+3}], {sm} offen {COH}")
        A("s_waitcnt vmcnt(0)")
        tagcheck([PCR+12*r+k for r in range(nr) for k in (1,3,5,7,9,11)])
        A(f"s_cbranch_scc1 {Lok}")
        A("s_sleep 1")
        A(f"s_add_u32 s{S_SPIN}, s{S_SPIN}, 1")
        A(f"s_cmp_lt_u32 s{S_SPIN}, 0x20000")
        A(f"s_cbranch_scc1 {Lp}")
        lab(Lok)
        P0 = PCR; P1 = PCR+12
        if isA: A(f"v_max_f32 v3, v{P0+8}, v{P1+8}")
        else:   A(f"v_mov_b32 v3, v{P0+8}")
        A("s_nop 1")
        A("v_max_f32_dpp v3, v3, v3 row_ror:4 row_mask:0xf bank_mask:0xf")
        A("s_nop 1")
        A("v_max_f32_dpp v3, v3, v3 row_ror:8 row_mask:0xf bank_mask:0xf")
        A("v_mov_b32 v4, v3")
        A("s_nop 1")
        A("v_permlane16_swap_b32 v3, v4")
        A("s_nop 0")
        A("v_max_f32 v3, v3, v4")
        A(f"v_sub_f32 v4, v{P0+8}, v3"); A(f"v_mul_f32 v4, s{S_C}, v4"); A("v_exp_f32 v4, v4")
        if isA:
            A(f"v_sub_f32 v5, v{P1+8}, v3"); A(f"v_mul_f32 v5, s{S_C}, v5"); A("v_exp_f32 v5, v5")
        A("s_nop 0")
        srcs = [(0,6),(2,7),(4,8),(6,9),(10,10)]
        for off, d in srcs:
            A(f"v_mul_f32 v{d}, v4, v{P0+off}")
            if isA: A(f"v_fmac_f32 v{d}, v5, v{P1+off}")
        A("s_nop 0")
        for d in range(6,11): A(f"v_add_f32_dpp v{d}, v{d}, v{d} row_ror:4 row_mask:0xf bank_mask:0xf")
        for d in range(6,11): A(f"v_add_f32_dpp v{d}, v{d}, v{d} row_ror:8 row_mask:0xf bank_mask:0xf")
        for d in range(6,11): A(f"v_mov_b32 v{d+5}, v{d}")
        A("s_nop 0")
        for d in range(6,11): A(f"v_permlane16_swap_b32 v{d}, v{d+5}")
        A("s_nop 0")
        for d in range(6,11): A(f"v_add_f32 v{d}, v{d}, v{d+5}")
        A("v_rcp_f32 v10, v10")
        A("s_nop 0")
        for d in range(6,10): A(f"v_mul_f32 v{d}, v10, v{d}")
        for i in range(4):
            A(f"v_cvt_pk_bf16_f32 v{16+2*i}, v{6+i}, 0")
            A(f"v_lshlrev_b32 v{17+2*i}, 16, v{16+2*i}")
        for k in range(8): A(f"v_mov_b32 v{6+k}, 0")
        for i4 in range(4):
            for k in range(4):
                A(f"v_dot2c_f32_bf16 v{6+2*k}, v{16+2*i4}, v{wo+4*i4+k}")
                A(f"v_dot2c_f32_bf16 v{7+2*k}, v{17+2*i4}, v{wo+4*i4+k}")
        A("s_nop 2")
        for k in range(8): A(f"v_add_f32_dpp v{6+k}, v{6+k}, v{6+k} quad_perm:[1,0,3,2] row_mask:0xf bank_mask:0xf")
        for k in range(8): A(f"v_add_f32_dpp v{6+k}, v{6+k}, v{6+k} quad_perm:[2,3,0,1] row_mask:0xf bank_mask:0xf")
        A(f"v_lshrrev_b32 v3, 5, v{V_LANE}"); A("v_lshlrev_b32 v3, 8, v3")
        A(f"v_lshrrev_b32 v4, 2, v{V_LANE}"); A("v_and_b32 v4, 7, v4"); A("v_lshl_add_u32 v3, v4, 5, v3")
        A(f"v_and_b32 v4, 3, v{V_LANE}"); A("v_cmp_eq_u32 vcc, 0, v4")
        A(f"s_and_saveexec_b64 s[{S_EX}:{S_EX+1}], vcc")
        for k in range(8): A(f"ds_add_f32 v3, v{6+k} offset:{outacc + 4*k}")
        A(f"s_mov_b64 exec, s[{S_EX}:{S_EX+1}]")
        Lskip = newlab("pc_skip")
        arrive(cntaddr, 7, Lskip)
        A(f"v_lshlrev_b32 v3, 3, v{V_LANE}")
        A(f"ds_read_b64 v[4:5], v3 offset:{outacc}")
        A(f"v_lshrrev_b32 v8, 5, v{V_LANE}"); A("v_lshlrev_b32 v8, 12, v8")
        A(f"v_and_b32 v9, 31, v{V_LANE}"); A("v_lshl_add_u32 v8, v9, 4, v8")
        A(f"s_lshl_b32 s4, s{S_TEAM}, 13"); A(f"s_lshl_b32 s5, s{S_MEM}, 9"); A("s_add_u32 s4, s4, s5"); A(f"s_add_u32 s4, s4, {ws_out:#x}")
        A("s_waitcnt lgkmcnt(0)")
        A("v_mov_b32 v6, v5"); A(f"v_mov_b32 v5, s{S_TAG}"); A(f"v_mov_b32 v7, s{S_TAG}")
        A(f"buffer_store_dwordx4 v[4:7], v8, s[{R_WS}:{R_WS+3}], s4 offen {COH}")
        A("s_nop 1")
        lab(Lskip)
    def phaseD(ws_out, colbase, final):
        A(f"s_lshr_b32 s{t0}, s2, 2")
        A(f"s_lshr_b32 s{t1}, s{t0}, 5")
        A(f"s_and_b32 s{t2}, s{t0}, 31")
        A(f"v_lshrrev_b32 v3, 4, v{V_LANE}"); A("v_lshlrev_b32 v3, 16, v3")
        A(f"v_and_b32 v4, 15, v{V_LANE}"); A("v_lshl_add_u32 v3, v4, 3, v3")
        A(f"s_lshl_b32 s4, s{t1}, 12"); A(f"s_lshl_b32 s5, s{t2}, 7"); A("s_add_u32 s4, s4, s5"); A(f"s_add_u32 s4, s4, {ws_out:#x}")
        A(f"s_mov_b32 s{S_SPIN}, 0")
        Lp = newlab("pd_poll"); Lok = newlab("pd_ok")
        lab(Lp)
        A("s_mov_b32 s5, s4")
        for i in range(8):
            A(f"buffer_load_dwordx2 v[{PCR+2*i}:{PCR+2*i+1}], v3, s[{R_WS}:{R_WS+3}], s5 offen {COH}")
            if i < 7: A("s_add_u32 s5, s5, 8192")
        A("s_waitcnt vmcnt(0)")
        tagcheck([PCR+2*i+1 for i in range(8)])
        A(f"s_cbranch_scc1 {Lok}")
        A("s_sleep 1")
        A(f"s_add_u32 s{S_SPIN}, s{S_SPIN}, 1")
        A(f"s_cmp_lt_u32 s{S_SPIN}, 0x20000")
        A(f"s_cbranch_scc1 {Lp}")
        lab(Lok)
        A(f"v_add_f32 v5, v{PCR}, v{PCR+2}")
        for i in range(2,8): A(f"v_add_f32 v5, v5, v{PCR+2*i}")
        A("v_mov_b32 v6, v5"); A("s_nop 1")
        A("v_permlane16_swap_b32 v5, v6"); A("s_nop 0"); A("v_add_f32 v5, v5, v6")
        A("v_mov_b32 v6, v5"); A("s_nop 1")
        A("v_permlane32_swap_b32 v5, v6"); A("s_nop 0"); A("v_add_f32 v5, v5, v6")
        A("s_nop 1")
        A("v_mov_b32_dpp v6, v5 quad_perm:[1,0,3,2] row_mask:0xf bank_mask:0xf")
        A("v_cvt_pk_bf16_f32 v7, v5, v6")
        srd(R_T0, P_OUT, 2*1024*2)
        A(f"s_lshl_b32 s4, s{t1}, 11"); A(f"s_lshl_b32 s5, s{t2}, 5"); A("s_add_u32 s4, s4, s5"); A(f"s_add_u32 s4, s4, {colbase*2}")
        A(f"v_lshlrev_b32 v3, 1, v{V_LANE}")
        A(f"s_mov_b64 s[{S_EX}:{S_EX+1}], exec"); A("s_mov_b64 exec, 0x5555")
        A(f"buffer_store_dword v7, v3, s[{R_T0}:{R_T0+3}], s4 offen")
        A(f"s_mov_b64 exec, s[{S_EX}:{S_EX+1}]")
        if final:
            Lne = newlab("noE")
            A("s_cmp_lg_u32 s2, 0"); A(f"s_cbranch_scc1 {Lne}")
            A(f"v_mov_b32 v3, {WS_E}"); A(f"v_mov_b32 v4, s{S_TAG}")
            A(f"s_mov_b64 s[{S_EX}:{S_EX+1}], exec"); A("s_mov_b64 exec, 1")
            A(f"buffer_store_dword v4, v3, s[{R_WS}:{R_WS+3}], 0 offen {COH}")
            A(f"s_mov_b64 exec, s[{S_EX}:{S_EX+1}]")
            lab(Lne)

    A(f"s_lshl_b32 s4, s{S_TEAM}, 2")
    A(f"s_add_u32 s{S_CNTA}, s{P_DBG}, s4"); A(f"s_addc_u32 s{S_CNTA+1}, s{P_DBG+1}, 0")
    A(f"s_mov_b32 s{S_ITER}, 0")
    A(f"s_mov_b32 s{S_REQ}, 0")
    VTK = 26
    def swap_if_needed(f):
        Ls = newlab("noswap")
        A(f"s_cmp_eq_u32 s{S_PB[f]}, s{S_CUR}")
        A(f"s_cbranch_scc1 {Ls}")
        for i in range(4): A(f"v_swap_b32 v{QB[0]+i}, v{QB[1]+i}")
        for i in range(8): A(f"v_swap_b32 v{ACCB[0]+i}, v{ACCB[1]+i}")
        A(f"v_swap_b32 v{MB[0]}, v{MB[1]}"); A(f"v_swap_b32 v{LB[0]}, v{LB[1]}")
        A(f"s_mov_b32 s{S_CUR}, s{S_PB[f]}")
        lab(Ls)
    def finish_request():
        Ln = newlab("noreq")
        A(f"s_cmp_eq_u32 s{S_REQ}, 0"); A(f"s_cbranch_scc1 {Ln}")
        A("s_waitcnt lgkmcnt(0)")
        A(f"s_add_u32 s{S_G}, s{S_G}, {8*NS}")
        A(f"s_sub_u32 s4, s{S_REQ}, 1"); A("s_lshl_b32 s4, s4, 2")
        A("v_mov_b32 v24, s4"); A(f"v_mov_b32 v25, s{S_G}")
        A(f"ds_write_b32 v24, v25 offset:{L_DESC}")
        A(f"s_mov_b32 s{S_REQ}, 0")
        lab(Ln)
    L_loop = "L_bloop"
    L_drain = ["L_drain0", "L_drain1"]
    lab(L_loop)
    for f in range(2):
        fo = f ^ 1
        A(f"v_mov_b32 v25, {L_TK}"); A("v_mov_b32 v24, 1")
        A(f"s_mov_b64 s[{S_EX}:{S_EX+1}], exec"); A("s_mov_b64 exec, 1")
        A(f"ds_add_rtn_u32 v{VTK}, v25, v24")
        A(f"s_mov_b64 exec, s[{S_EX}:{S_EX+1}]")
        swap_if_needed(f)
        A("s_waitcnt vmcnt(12)")
        qk(KR(f), QB[0])
        A("s_waitcnt lgkmcnt(0)")
        A(f"v_readfirstlane_b32 s{t0}, v{VTK}")
        A("s_nop 3")
        A(f"s_lshr_b32 s{t1}, s{t0}, 3")
        A(f"s_and_b32 s{t2}, s{t0}, 7")
        if NS < 32:
            Lnr = newlab("norq")
            A(f"s_cmp_lg_u32 s{t2}, 0"); A(f"s_cbranch_scc1 {Lnr}")
            A(f"s_add_u32 s4, s{t1}, {AHEAD}"); A(f"s_cmp_lt_u32 s4, {NS}"); A(f"s_cbranch_scc1 {Lnr}")
            A(f"s_cmp_ge_u32 s4, {NS+280}"); A(f"s_cbranch_scc1 {Lnr}")
            A(f"s_sub_u32 s{S_REQ}, s4, {NS-1}")
            A(f"s_mov_b32 s{S_G}, 1")
            A(f"s_atomic_add s{S_G}, s[{S_CNTA}:{S_CNTA+1}], 0 glc")
            lab(Lnr)
            Lst = newlab("stat"); Lgo = newlab("gotg")
            A(f"s_cmp_lt_u32 s{t1}, {NS}"); A(f"s_cbranch_scc1 {Lst}")
            A(f"s_sub_u32 s4, s{t1}, {NS}"); A("s_lshl_b32 s4, s4, 2"); A("v_mov_b32 v24, s4")
            Lsp = newlab("dspin")
            finish_request()
            lab(Lsp)
            A(f"ds_read_b32 v25, v24 offset:{L_DESC}")
            A("s_waitcnt lgkmcnt(0)")
            A(f"v_readfirstlane_b32 s{t3}, v25")
            A("s_nop 3")
            A(f"s_cmp_eq_u32 s{t3}, -1")
            A(f"s_cbranch_scc1 {Lsp}")
            A(f"s_branch {Lgo}")
            lab(Lst)
            A(f"s_lshl_b32 s{t3}, s{t1}, 3"); A(f"s_add_u32 s{t3}, s{t3}, s{S_MEM}")
            lab(Lgo)
        else:
            A(f"s_lshl_b32 s{t3}, s{t1}, 3"); A(f"s_add_u32 s{t3}, s{t3}, s{S_MEM}")
        A(f"s_cmp_ge_u32 s{t3}, 256")
        A(f"s_cbranch_scc1 {L_drain[f]}")
        b_addr(f"s{t3}", f"s{t2}", f"s{S_VOFF[f]}", f"s{t4}")
        loadK(f, f"s{S_VOFF[f]}")
        reduce_softmax(ACCB[0], MB[0], LB[0])
        A("s_waitcnt vmcnt(12)")
        pv(VR(f), ACCB[0])
        loadV(f, f"s{S_VOFF[f]}")
        A(f"s_mov_b32 s{S_PB[f]}, s{t4}")
        if NS < 32: finish_request()
    A(f"s_add_u32 s{S_ITER}, s{S_ITER}, 1")
    Lns = newlab("noside")
    A(f"s_add_u32 s4, s{S_WAVE}, {g.NA_ITER}")
    A(f"s_cmp_lg_u32 s{S_ITER}, s4"); A(f"s_cbranch_scc1 {Lns}")
    wo_load(WOA, P_AWO)
    wo_load(WOB, P_BWO)
    phaseC(True, WOA, L_OUTA, L_CNTCA, WS_OUTA)
    lab(Lns)
    Lnd = newlab("noD")
    A(f"s_cmp_lg_u32 s{S_ITER}, {g.ND_ITER}"); A(f"s_cbranch_scc1 {Lnd}")
    A(f"s_cmp_lg_u32 s{S_WAVE}, 1"); A(f"s_cbranch_scc1 {Lnd}")
    A("s_and_b32 s4, s2, 3"); A("s_cmp_lg_u32 s4, 1"); A(f"s_cbranch_scc1 {Lnd}")
    phaseD(WS_OUTA, 0, False)
    lab(Lnd)
    A(f"s_branch {L_loop}")

    L_tail = "L_tail"
    for f in range(2):
        fo = f ^ 1
        lab(L_drain[f])
        reduce_softmax(ACCB[0], MB[0], LB[0])
        A("s_waitcnt vmcnt(8)")
        pv(VR(f), ACCB[0])
        swap_if_needed(fo)
        A("s_waitcnt vmcnt(4)")
        qk(KR(fo), QB[0])
        A("s_nop 0")
        reduce_softmax(ACCB[0], MB[0], LB[0])
        A("s_waitcnt vmcnt(0)")
        pv(VR(fo), ACCB[0])
        A(f"s_branch {L_tail}")

    lab(L_tail)
    stamp(3)
    if NS < 32: finish_request()
    Lsd = newlab("sidedone")
    A(f"s_add_u32 s4, s{S_WAVE}, {g.NA_ITER}")
    A(f"s_cmp_ge_u32 s{S_ITER}, s4"); A(f"s_cbranch_scc1 {Lsd}")
    wo_load(WOA, P_AWO)
    wo_load(WOB, P_BWO)
    phaseC(True, WOA, L_OUTA, L_CNTCA, WS_OUTA)
    lab(Lsd)
    A(f"v_and_b32 v{VS}, 15, v{V_LANE}"); A(f"v_lshlrev_b32 v{VS}, 5, v{VS}")
    A(f"v_lshrrev_b32 v{VML}, 4, v{V_LANE}"); A(f"v_lshl_add_u32 v{VS}, v{VML}, 2, v{VS}")
    A(f"s_lshl_b32 s4, s{S_WAVE}, 9"); A(f"v_add_u32 v{VS}, s4, v{VS}")
    A(f"s_lshl_b32 s4, s{S_WAVE}, 3"); A(f"v_mov_b32 v{VML}, s4")
    A(f"s_lshl_b32 s4, s{S_CUR}, 12"); A(f"v_add_u32 v30, s4, v{VS}")
    A(f"s_lshl_b32 s4, s{S_CUR}, 6"); A(f"v_add_u32 v31, s4, v{VML}")
    wred(ACCB[0], MB[0], LB[0], L_SLOTB, L_MLB, 30, 31)
    A(f"s_xor_b32 s5, s{S_CUR}, 1")
    A(f"s_lshl_b32 s4, s5, 12"); A(f"v_add_u32 v30, s4, v{VS}")
    A(f"s_lshl_b32 s4, s5, 6"); A(f"v_add_u32 v31, s4, v{VML}")
    wred(ACCB[1], MB[1], LB[1], L_SLOTB, L_MLB, 30, 31)
    L_bm = newlab("bmerged")
    arrive(L_CNTB, 7, L_bm)
    g.mlr = KR(0)
    A(f"s_lshl_b32 s{t0}, s{S_TEAM}, 4"); A(f"s_add_u32 s{t0}, s{t0}, s{S_MEM}")
    A(f"s_lshl_b32 s{t1}, s{t0}, 4"); A(f"s_add_u32 s{t1}, s{t1}, {WS_MLB:#x}")
    A(f"s_lshl_b32 s{t0}, s{t0}, 10"); A(f"s_add_u32 s{t0}, s{t0}, {WS_PARTB:#x}")
    merge_publish(L_SLOTB, 512, L_MLB, f"s{t0}", f"s{t1}")
    A(f"s_add_u32 s{t0}, s{t0}, {8*1024}"); A(f"s_add_u32 s{t1}, s{t1}, {8*16}")
    merge_publish(L_SLOTB + 4096, 512, L_MLB + 64, f"s{t0}", f"s{t1}")
    lab(L_bm)
    stamp(4)
    phaseC(False, WOB, L_OUTB, L_CNTCB, WS_OUTB)
    stamp(5)
    Lnd2 = newlab("noD2")
    A(f"s_cmp_ge_u32 s{S_ITER}, {g.ND_ITER}"); A(f"s_cbranch_scc1 {Lnd2}")
    A(f"s_cmp_lg_u32 s{S_WAVE}, 1"); A(f"s_cbranch_scc1 {Lnd2}")
    A("s_and_b32 s4, s2, 3"); A("s_cmp_lg_u32 s4, 1"); A(f"s_cbranch_scc1 {Lnd2}")
    phaseD(WS_OUTA, 0, False)
    lab(Lnd2)
    A(f"s_cmp_lg_u32 s{S_WAVE}, 0"); A("s_cbranch_scc1 L_end")
    A("s_and_b32 s4, s2, 3"); A("s_cmp_lg_u32 s4, 0"); A("s_cbranch_scc1 L_end")
    phaseD(WS_OUTB, 512, True)
    stamp(6)
    lab("L_end")
    A("s_endpgm")
    return g

HEADER = open('concat_heads__sliding_block_cached__mha_block_cached__decode.s.ref').read().split('; Override launch')[0]

def emit(path, **kw):
    g = build(**kw)
    out = HEADER
    out += f"; @launch grid=(256,1,1) block=(512,1,1) lds={L_TOTAL}\n"
    out += '.amdgcn_target "amdgcn-amd-amdhsa--gfx950"\n.text\n'
    out += f".globl {KNAME}\n.p2align 8\n.type {KNAME},@function\n{KNAME}:\n"
    import hazard
    out += "\n".join(hazard.process(g.L)) + "\n"
    out += f""".section .rodata,"a"
.p2align 6
.amdhsa_kernel {KNAME}
  .amdhsa_next_free_vgpr 256
  .amdhsa_next_free_sgpr 102
  .amdhsa_accum_offset 256
  .amdhsa_group_segment_fixed_size 0
  .amdhsa_kernarg_size 104
  .amdhsa_user_sgpr_count 2
  .amdhsa_user_sgpr_kernarg_segment_ptr 1
  .amdhsa_system_sgpr_workgroup_id_x 1
.end_amdhsa_kernel
"""
    open(path, 'w').write(out)

if __name__ == '__main__':
    import argparse
    ap = argparse.ArgumentParser()
    ap.add_argument('-o', default='concat_heads__sliding_block_cached__mha_block_cached__decode.s')
    ap.add_argument('--ns', type=int, default=32)
    ap.add_argument('--ahead', type=int, default=2)
    ap.add_argument('--stamps', action='store_true')
    a = ap.parse_args()
    emit(a.o, NS=a.ns, AHEAD=a.ahead, stamps=a.stamps)
```
